```python
import torch

def _softmax(x, axis=-1):
    return torch.softmax(x, dim=axis)
def _gelu(x):
    return torch.nn.functional.gelu(x, approximate="tanh")
def _silu(x):
    return torch.nn.functional.silu(x)
def _sigmoid(x):
    return torch.sigmoid(x)
def _layernorm(x, axis=-1, eps=1e-5):
    m = x.mean(dim=axis, keepdim=True)
    v = x.var(dim=axis, keepdim=True, unbiased=False)
    return (x - m) / torch.sqrt(v + eps)
def _scatter_add(tgt, idx, src, axis=0):
    return tgt.clone().index_add_(axis, idx, src)
def _segment_sum(src, seg, n):
    out = torch.zeros((n,) + src.shape[1:], dtype=src.dtype)
    return out.index_add_(0, seg, src)
def _pad(x, pw):
    flat = tuple(v for pair in reversed(pw) for v in pair)
    return torch.nn.functional.pad(x, flat)

kernel_name = 'gated_mix__ssm_conv_s4__dense_activation_mish__prompt'

def setup_inputs():

    _w = (lambda a: (lambda t: t.to(torch.bfloat16) if t.is_floating_point() else t)(torch.as_tensor(a)))
    def _A_setup():
        B, L, D, N = 1, 2048, 512, 128
        A_re = -(lambda _x: torch.exp(torch.as_tensor(_x)))((lambda *s: torch.randn(*s, dtype=torch.bfloat16) * 6.4)(D, N))
        A_im = torch.pi * (lambda *s: torch.randn(*s, dtype=torch.bfloat16) * 0.05)(D, N)
        B_re = (lambda *s: torch.randn(*s, dtype=torch.bfloat16) * 0.1)(D, N)
        B_im = (lambda *s: torch.randn(*s, dtype=torch.bfloat16) * 0.1)(D, N)
        C_re = (lambda *s: torch.randn(*s, dtype=torch.bfloat16) * 0.1)(D, N)
        C_im = (lambda *s: torch.randn(*s, dtype=torch.bfloat16) * 0.1)(D, N)
        log_dt = (lambda *s: torch.randn(*s, dtype=torch.bfloat16) * 0.05)(D) * 0.5 - 4.0
        Dskip = (lambda *s: torch.randn(*s, dtype=torch.bfloat16) * 0.05)(D)
        return {
            "u": _w((lambda *s: torch.randn(*s, dtype=torch.bfloat16) * 0.05)(B, L, D)),
            "A_re": _w(A_re),
            "A_im": _w(A_im),
            "B_re": _w(B_re),
            "B_im": _w(B_im),
            "C_re": _w(C_re),
            "C_im": _w(C_im),
            "log_dt": _w(log_dt),
            "Dskip": _w(Dskip),
        }
    _A_in = _A_setup()

    def _B_setup():
        B, S, D, F = 1, 2048, 512, 1792
        return {
            "x": _w((lambda *s: torch.randn(*s, dtype=torch.bfloat16) * 0.05)(B, S, D)),
            "w1": _w((lambda *s: torch.randn(*s, dtype=torch.bfloat16) * 6.4)(D, F) * (D ** -0.5)),
            "b1": _w((lambda *s: torch.randn(*s, dtype=torch.bfloat16) * 0.05)(F)),
            "w2": _w((lambda *s: torch.randn(*s, dtype=torch.bfloat16) * 0.05)(F, D) * (F ** -0.5)),
        }
    _B_in = _B_setup()

    return {
        "A_u": _A_in["u"],
        "A_A_re": _A_in["A_re"],
        "A_A_im": _A_in["A_im"],
        "A_B_re": _A_in["B_re"],
        "A_B_im": _A_in["B_im"],
        "A_C_re": _A_in["C_re"],
        "A_C_im": _A_in["C_im"],
        "A_log_dt": _A_in["log_dt"],
        "A_Dskip": _A_in["Dskip"],
        "B_x": _B_in["x"],
        "B_w1": _B_in["w1"],
        "B_b1": _B_in["b1"],
        "B_w2": _B_in["w2"],
        "gate_w": _w((lambda *s: torch.randn(*s, dtype=torch.bfloat16) * 0.05)(512) * 16.0),
    }

def reference(A_u, A_A_re, A_A_im, A_B_re, A_B_im, A_C_re, A_C_im, A_log_dt, A_Dskip, B_x, B_w1, B_b1, B_w2, gate_w):
    def _A_ref(u, A_re, A_im, B_re, B_im, C_re, C_im, log_dt, Dskip):
        Bsz, L, D = u.shape
        dt = torch.exp(log_dt)[:, None]
        A = A_re + 1j * A_im
        Bc = B_re + 1j * B_im
        Cc = C_re + 1j * C_im
        logdA = dt * A
        dB = dt * Bc
        l = (lambda x, dt: x.to(dt))(torch.arange(L), A_re.dtype)
        P = torch.exp(logdA[:, :, None] * l[None, None, :])
        K = torch.einsum("dn,dnl,dn->dl", Cc, P, dB).real
        L2 = 2 * L
        Kp = _pad(K, ((0, 0), (0, L)))
        up = (lambda x, *d: x.permute(*d))(u, 0, 2, 1)
        up = _pad(up, ((0, 0), (0, 0), (0, L)))
        Kf = (lambda x, axes=(-2,-1): torch.fft.rfft2(x.float(), dim=axes))(Kp[:, None, :], axes=(-2, -1))
        Uf = (lambda x, axes=(-2,-1): torch.fft.rfft2(x.float(), dim=axes))(up[:, :, None, :], axes=(-2, -1))
        Yf = Uf * Kf[None, :, :, :]
        y = (lambda x, s, axes=(-2,-1): torch.fft.irfft2(x, s=s, dim=axes).to(torch.bfloat16))(Yf, (1, L2), axes=(-2, -1))[:, :, 0, :L]
        y = (lambda x, *d: x.permute(*d))(y, 0, 2, 1) + u * Dskip[None, None, :]
        return y

    def _B_ref(x, w1, b1, w2):
        h = torch.einsum("bsd,df->bsf", x, w1) + b1
        sp = torch.log1p(torch.exp(-torch.abs(h))) + torch.where(h > 0, h, torch.zeros_like(h))
        act = h * torch.tanh(sp)
        return torch.einsum("bsf,fd->bsd", act, w2)

    x = A_u
    g = _sigmoid((x * gate_w).sum(-1, keepdims=True))
    a = _A_ref(x, A_A_re, A_A_im, A_B_re, A_B_im, A_C_re, A_C_im, A_log_dt, A_Dskip)
    b = _B_ref(x, B_w1, B_b1, B_w2)
    return g * a + (1 - g) * b
```

```python
import re

TRANS = ("v_exp_f32", "v_log_f32", "v_rcp_f32", "v_rsq_f32", "v_sqrt_f32", "v_sin_f32", "v_cos_f32",
         "v_rcp_iflag_f32")
REG_RE = re.compile(r"^(-?)(?:abs\(|\|)?([vas])(?:(\d+)|\[(\d+):(\d+)\])\)?\|?$")


def regs_of(tok):
    tok = tok.strip()
    if tok == "vcc":
        return {("s", "vcc")}
    if tok == "exec":
        return {("s", "exec")}
    if tok == "m0":
        return {("s", "m0")}
    m = REG_RE.match(tok)
    if not m:
        return set()
    f = m.group(2)
    if m.group(3) is not None:
        return {(f, int(m.group(3)))}
    return {(f, i) for i in range(int(m.group(4)), int(m.group(5)) + 1)}


class Ins:
    __slots__ = ("text", "mn", "ops", "kind", "wr", "rd", "tag", "wait", "srcc", "passes", "mods")

    def __init__(self, text, tag=None):
        self.text = text
        self.tag = tag
        self.wait = None
        self.srcc = set()
        self.passes = 0
        s = text.split(";")[0].strip()
        parts = s.split(None, 1)
        self.mn = parts[0]
        mn = self.mn
        rest = parts[1] if len(parts) > 1 else ""
        raw = [t.strip() for t in re.split(r",(?![^\[]*\])", rest)] if rest else []
        ops = []
        self.mods = ""
        for i, t in enumerate(raw):
            if i == len(raw) - 1:
                sub = t.split(None, 1)
                ops.append(sub[0])
                if len(sub) > 1:
                    self.mods = sub[1]
            else:
                ops.append(t)
        self.ops = ops
        R = [regs_of(o) for o in ops]
        allr = lambda idx: set().union(*[R[i] for i in idx if i < len(R)]) if idx else set()
        n = len(ops)
        self.wr, self.rd = set(), set()
        if mn.startswith("v_mfma"):
            self.kind = "mfma"
            self.wr = R[0]
            self.rd = allr([1, 2, 3])
            self.srcc = R[3]
            self.passes = 8 if "32x32" in mn else 4
        elif mn.startswith("v_"):
            self.kind = "valu"
            if mn.startswith("v_cmp"):
                self.wr = R[0]
                self.rd = allr(range(1, n))
            elif mn.startswith("v_permlane"):
                self.wr = allr([0, 1])
                self.rd = allr([0, 1])
            elif mn.startswith(("v_add_co", "v_sub_co", "v_addc_co", "v_subb_co")):
                self.wr = allr([0, 1])
                self.rd = allr(range(2, n))
            else:
                self.wr = R[0]
                self.rd = allr(range(1, n))
                if mn.startswith(("v_fmac", "v_pk_fmac", "v_writelane", "v_dot2c")) or "_dpp" in mn:
                    self.rd |= R[0]
                if mn.startswith("v_cndmask") and n == 3:
                    self.rd |= {("s", "vcc")}
        elif mn.startswith("ds_"):
            self.kind = "ds"
            if mn.startswith(("ds_read", "ds_bpermute", "ds_permute", "ds_swizzle")):
                self.wr = R[0]
                self.rd = allr(range(1, n))
            else:
                self.rd = allr(range(n))
        elif mn.startswith(("global_", "buffer_")):
            self.kind = "vmem"
            lds = " lds" in (" " + self.mods) or "load_lds" in mn
            if "store" in mn or ("atomic" in mn and "sc0" not in self.mods):
                self.rd = allr(range(n))
            elif lds:
                self.rd = allr(range(n)) | {("s", "m0")}
            elif mn.startswith(("buffer_inv", "buffer_wbl2")):
                pass
            else:
                self.wr = R[0]
                self.rd = allr(range(1, n))
                if "d16" in mn:
                    self.rd |= R[0]
        elif mn.startswith(("s_load", "s_memtime", "s_memrealtime")):
            self.kind = "smem"
            self.wr = R[0]
            self.rd = allr(range(1, n))
        elif mn.startswith("s_"):
            self.kind = "salu"
            if mn.startswith(("s_cmp", "s_waitcnt", "s_nop", "s_barrier", "s_branch", "s_cbranch", "s_endpgm",
                              "s_sleep", "s_setprio")):
                self.rd = allr(range(n))
            else:
                self.wr = R[0]
                self.rd = allr(range(1, n))
                if "saveexec" in mn:
                    self.wr |= {("s", "exec")}
                    self.rd |= {("s", "exec")}
        else:
            raise ValueError("unknown instruction: " + text)


class Marker:
    def __init__(self, kind, val=None):
        self.kind = kind
        self.val = val


class Asm:
    def __init__(self):
        self.items = []
        self.n_tag = 0

    def __call__(self, text, tag=None):
        for line in text.strip().split("\n"):
            line = line.strip()
            if not line or line.startswith(";"):
                continue
            if line.endswith(":"):
                self.label(line[:-1])
                continue
            self.items.append(Ins(line, tag))
        return tag

    def newtag(self):
        self.n_tag += 1
        return "T%d" % self.n_tag

    def label(self, name):
        self.items.append(Marker("label", name))

    def comment(self, text):
        self.items.append(Marker("comment", text))

    def raw(self, text):
        self.items.append(Marker("raw", text))

    def wait_vm(self, tag):
        self.items.append(Marker("wait_vm", tag))

    def wait_lg(self, tag):
        self.items.append(Marker("wait_lg", tag))

    def save_state(self, name):
        self.items.append(Marker("save", name))

    def load_state(self, name):
        self.items.append(Marker("load", name))

    def insert_waits(self):
        out = []
        vm, lg = [], []
        saved = {}

        def emit_wait(nvm=None, nlg=None):
            nonlocal vm, lg
            parts = []
            if nvm is not None:
                nvm = min(nvm, 63)
                if len(vm) > nvm:
                    parts.append("vmcnt(%d)" % nvm)
                    vm = vm[len(vm) - nvm:] if nvm else []
            if nlg is not None:
                nlg = min(nlg, 15)
                if len(lg) > nlg:
                    parts.append("lgkmcnt(%d)" % nlg)
                    lg = lg[len(lg) - nlg:] if nlg else []
            if parts:
                out.append(Ins("s_waitcnt " + " ".join(parts)))

        for it in self.items:
            if isinstance(it, Marker):
                if it.kind == "wait_vm":
                    idx = [i for i, o in enumerate(vm) if o.tag == it.val]
                    if idx:
                        emit_wait(nvm=len(vm) - 1 - idx[-1])
                elif it.kind == "wait_lg":
                    idx = [i for i, o in enumerate(lg) if o.tag == it.val]
                    if idx:
                        if any(o.kind == "smem" for o in lg):
                            emit_wait(nlg=0)
                        else:
                            emit_wait(nlg=len(lg) - 1 - idx[-1])
                elif it.kind == "save":
                    saved[it.val] = (list(vm), list(lg))
                elif it.kind == "load":
                    vm, lg = (list(x) for x in saved[it.val])
                else:
                    out.append(it)
                continue
            touched = it.rd | it.wr
            nvm = nlg = None
            if it.mn != "s_waitcnt":
                idx = [i for i, o in enumerate(vm) if o.wr & touched]
                if idx:
                    nvm = len(vm) - 1 - idx[-1]
                idx = [i for i, o in enumerate(lg) if o.wr & touched]
                if idx:
                    nlg = 0 if any(o.kind == "smem" for o in lg) else len(lg) - 1 - idx[-1]
                emit_wait(nvm, nlg)
            out.append(it)
            if it.mn == "s_waitcnt":
                m = re.search(r"vmcnt\((\d+)\)", it.text)
                if m:
                    k = int(m.group(1))
                    vm = vm[len(vm) - k:] if k and len(vm) > k else (vm if k else [])
                m = re.search(r"lgkmcnt\((\d+)\)", it.text)
                if m:
                    k = int(m.group(1))
                    lg = lg[len(lg) - k:] if k and len(lg) > k else (lg if k else [])
            elif it.kind == "vmem":
                vm.append(it)
                if len(vm) > 63:
                    vm = vm[-63:] if False else vm
            elif it.kind in ("ds", "smem"):
                lg.append(it)
        self.items = out

    def insert_nops(self):
        out = []
        hist = []
        pos = 0

        def need(prod, cons):
            r = 0
            vw = {x for x in prod.wr if x[0] in "va"}
            sw = {x for x in prod.wr if x[0] == "s"}
            if prod.kind == "valu":
                if cons.kind == "mfma" and vw & cons.rd:
                    r = max(r, 2)
                if cons.kind == "vmem" and sw & cons.rd:
                    r = max(r, 5)
                if cons.kind == "valu" and sw & cons.rd:
                    r = max(r, 4 if cons.mn.startswith(("v_readlane", "v_writelane")) else 2)
                if cons.kind == "salu" and sw & cons.rd:
                    r = max(r, 1)
                if cons.mn.startswith(("v_readlane", "v_readfirstlane")) and vw & cons.rd:
                    r = max(r, 1)
                if prod.mn.replace("_e32", "").replace("_e64", "") in TRANS and vw & cons.rd and cons.kind != "smem":
                    r = max(r, 1)
                if ("_dpp" in cons.mn or cons.mn.startswith("v_permlane")) and vw & cons.rd:
                    r = max(r, 2)
            if prod.kind == "mfma":
                big = prod.passes == 8
                if cons.kind == "mfma":
                    ab = regs_of(cons.ops[1]) | regs_of(cons.ops[2])
                    if prod.wr & ab:
                        r = max(r, 12 if big else 8)
                    if prod.wr & cons.srcc:
                        if not (prod.wr == cons.srcc and prod.passes == cons.passes):
                            r = max(r, 10 if big else 6)
                    if prod.wr & cons.wr and not (prod.wr == cons.wr and prod.passes == cons.passes):
                        r = max(r, 12 if big else 8)
                elif cons.kind in ("valu", "ds", "vmem"):
                    if prod.wr & (cons.rd | cons.wr):
                        r = max(r, 12 if big else 8)
                    if cons.kind == "valu" and prod.srcc & cons.wr:
                        r = max(r, 7 if big else 3)
            if prod.kind == "vmem" and ("store" in prod.mn) and ("x4" in prod.mn or "x3" in prod.mn):
                data = {x for x in prod.rd if x[0] in "va"}
                if data & cons.wr:
                    r = max(r, 2 if cons.kind in ("valu", "mfma") else 1)
            if prod.kind == "salu" and ("s", "m0") in prod.wr and cons.kind == "vmem" and ("s", "m0") in cons.rd:
                r = max(r, 1)
            return r

        for it in self.items:
            if isinstance(it, Marker):
                out.append(it)
                continue
            req = 0
            for (p, ppos) in hist:
                d = pos - ppos - 1
                r = need(p, it)
                if r > d:
                    req = max(req, r - d)
            while req > 0:
                k = min(req, 16)
                out.append(Ins("s_nop %d" % (k - 1)))
                pos += k
                req -= k
            out.append(it)
            hist.append((it, pos))
            if it.mn == "s_nop":
                pos += int(it.ops[0], 0) + 1
            else:
                pos += 1
            hist = [(p, q) for (p, q) in hist if pos - q <= 21]
        self.items = out

    def text(self):
        lines = []
        for it in self.items:
            if isinstance(it, Marker):
                if it.kind == "label":
                    lines.append(it.val + ":")
                elif it.kind == "comment":
                    lines.append("; " + it.val)
                elif it.kind == "raw":
                    lines.append(it.val)
            else:
                lines.append("  " + it.text.split(";")[0].strip())
        return "\n".join(lines) + "\n"

    def finish(self):
        self.insert_waits()
        self.insert_nops()
        return self.text()

    def count(self):
        return sum(1 for it in self.items if isinstance(it, Ins))
```

```python
import numpy as np
def bf2f(u16):
    return (u16.astype(np.uint32) << 16).view(np.float32)
def f2bf(f):
    f = np.ascontiguousarray(f, dtype=np.float32)
    u = f.view(np.uint32)
    r = ((u + 0x7FFF + ((u >> 16) & 1)) >> 16).astype(np.uint16)
    return r
def rbf(f):
    return bf2f(f2bf(f))
def load(seed=0):
    z = np.load("ref%d.npz" % seed)
    return {k: z[k] for k in z.files}
```

```python
import sys
import struct
import numpy as np
from asmlib import Asm

NAME = "gated_mix__ssm_conv_s4__dense_activation_mish__prompt"
KNAME = NAME + "_kernel"

WS_UT = 0x000000
WS_AT = 0x200000
WS_H = 0x400000
WS_G = 0xB00000
WS_FU = 0xB10000
WS_FH = 0xB10400
WS_FA = 0xB11000
WS_NONCE = 0xB12000

LDS_TOTAL = 163840
W2S = 0
XT = 57344
XT_CH = 34816
YOFF = 17408
TROW = 544
RV = 126976
RV_CP = 4160
UL = 143616
UL_CH = 4608
CC = 152832
CC_CH = 2048
EX = XT
EXR = 0
ATL = 49152
OUTL = 57344

L2E = 1.4426950408889634
L2E_HI = float(np.float32(L2E))
L2E_LO = float(np.float32(L2E - L2E_HI))
LN2 = 0.6931471805599453
INV2PI = 0.15915494309189535
SPIN_MAX = 1 << 18


def fhex(x):
    return "0x%08x" % struct.unpack("<I", struct.pack("<f", x))[0]


def vr(a, n=1):
    return "v%d" % a if n == 1 else "v[%d:%d]" % (a, a + n - 1)


def ar(a, n=1):
    return "a%d" % a if n == 1 else "a[%d:%d]" % (a, a + n - 1)


S_U, S_ARE, S_AIM, S_BRE, S_BIM, S_CRE, S_CIM, S_LDT = (64, 66, 68, 70, 72, 74, 76, 78)
S_W1, S_B1, S_W2, S_GW = 80, 82, 84, 86
S_DSK, S_WS, S_OUT = 42, 20, 22
SRD_U, SRD_W1, SRD_W2 = 8, 12, 16
S_WAVE, S_X, S_Q, S_NONCE = 44, 45, 46, 47
S_TB, S_FB, S_M0W = 48, 49, 50
S_SOX, S_SOW = 51, 52
S_T0, S_T1, S_T2, S_T3 = 53, 54, 55, 56
S_CH, S_HF = 57, 58
S_L2E = 60
S_SPIN = 62
S_EX = 88
S_TBL = 90
S_W2O = 92
S_C = 94


def sp(a):
    return "s[%d:%d]" % (a, a + 1)


V_LANE = 1
V_PARAM = 10
V_NONCE = 18


def expansion_table():
    import util
    lbf = util.rbf(np.arange(2049, dtype=np.float32))

    def idx(L):
        if L < 0:
            return 1
        if L < 128:
            return L + 2
        b = int(util.f2bf(np.array([L], np.float32))[0])
        return b - 0x4280 + 2

    tab = np.zeros((2, 8, 64, 4), np.uint32)
    for cp in range(2):
        for lane in range(64):
            for j in range(4):
                for k in range(4):
                    y = 8 * (lane + 64 * j) + 2 * k
                    L1 = 2047 - cp - y
                    L2 = L1 - 1
                    i1, i2 = idx(L1), idx(L2)
                    assert 0 <= i1 - i2 <= 1, (L1, i1, i2)
                    Dw = i2 >> 1
                    o1, o2 = i1 - 2 * Dw, i2 - 2 * Dw
                    sel = ((2 * o2 + 1) << 24) | ((2 * o2) << 16) | ((2 * o1 + 1) << 8) | (2 * o1)
                    tab[cp, j, lane, k] = 4 * Dw
                    tab[cp, 4 + j, lane, k] = sel
    return tab


class Gen:
    def __init__(self, stop=None, debug=False):
        self.A = Asm()
        self.stop = stop
        self.nlab = 0

    def lab(self, base):
        self.nlab += 1
        return "%s_%d" % (base, self.nlab)

    def exec_mask(self, mask_text):
        A = self.A
        A("s_mov_b64 %s, exec" % sp(S_EX))
        A("s_mov_b64 exec, %s" % mask_text)

    def exec_restore(self):
        self.A("s_mov_b64 exec, %s" % sp(S_EX))

    def poll(self, voff, vtmp, nlanes_desc):
        A = self.A
        Lp = self.lab("Lpoll")
        Ld = self.lab("Ldone")
        A("s_mov_b32 s%d, 0" % S_SPIN)
        A.label(Lp)
        A("global_load_dword %s, %s, %s sc1" % (vr(vtmp), vr(voff), sp(S_WS)))
        A("s_add_u32 s%d, s%d, 1" % (S_SPIN, S_SPIN))
        A("s_waitcnt vmcnt(0)")
        A("v_cmp_ne_u32 vcc, s%d, %s" % (S_NONCE, vr(vtmp)))
        A("s_cmp_gt_u32 s%d, %d" % (S_SPIN, SPIN_MAX))
        A("s_cbranch_scc1 %s" % Ld)
        A("s_cbranch_vccnz %s" % Lp)
        A.label(Ld)

    def set_flag(self, soff_sgpr, vtmp, vtmp2):
        A = self.A
        Ls = self.lab("Lnoflag")
        A("s_waitcnt vmcnt(0) lgkmcnt(0)")
        A("s_barrier")
        A("s_cmp_lg_u32 s%d, 0" % S_WAVE)
        A("s_cbranch_scc1 %s" % Ls)
        A("v_mov_b32 %s, s%d" % (vr(vtmp), soff_sgpr))
        A("v_mov_b32 %s, s%d" % (vr(vtmp2), S_NONCE))
        self.exec_mask("1")
        A("global_store_dword %s, %s, %s sc1" % (vr(vtmp), vr(vtmp2), sp(S_WS)))
        self.exec_restore()
        A.label(Ls)

    def prologue(self):
        A = self.A
        A("s_cmp_ge_u32 s2, 256")
        A("s_cbranch_scc1 Lend")
        A("s_load_dwordx16 s[64:79], s[0:1], 0")
        A("s_load_dwordx2 %s, s[0:1], 128" % sp(S_WS))
        A("s_load_dwordx4 s[80:83], s[0:1], 80")
        A("s_load_dwordx4 s[84:87], s[0:1], 96")
        A("s_load_dwordx2 %s, s[0:1], 64" % sp(S_DSK))
        A("s_load_dwordx2 %s, s[0:1], 112" % sp(S_OUT))
        A("v_and_b32 v%d, 63, v0" % V_LANE)
        A("v_lshrrev_b32 v2, 6, v0")
        A("s_and_b32 s%d, s2, 7" % S_X)
        A("v_readfirstlane_b32 s%d, v2" % S_WAVE)
        A("s_lshr_b32 s%d, s2, 3" % S_Q)
        A("s_mov_b32 s%d, %s" % (S_L2E, fhex(L2E_HI)))
        A("s_mov_b32 s%d, %s" % (S_L2E + 1, fhex(L2E_HI)))
        A("s_getpc_b64 %s" % sp(S_TBL))
        A.label("Lpc0")
        A("s_add_u32 s%d, s%d, Ltable-Lpc0" % (S_TBL, S_TBL))
        A("s_addc_u32 s%d, s%d, 0" % (S_TBL + 1, S_TBL + 1))
        A("s_lshr_b32 s%d, s%d, 1" % (S_CH, S_WAVE))
        A("s_and_b32 s%d, s%d, 1" % (S_HF, S_WAVE))
        A("s_lshl_b32 s%d, s%d, 12" % (S_M0W, S_WAVE))
        A("s_waitcnt lgkmcnt(0)")
        for srd, base, size in ((SRD_U, S_U, 2048 * 1024), (SRD_W1, S_W1, 512 * 3584), (SRD_W2, S_W2, 1792 * 1024)):
            A("s_mov_b32 s%d, s%d" % (srd, base))
            A("s_mov_b32 s%d, s%d" % (srd + 1, base + 1))
            A("s_mov_b32 s%d, 0x%x" % (srd + 2, size))
            A("s_mov_b32 s%d, 0x20000" % (srd + 3))

    def late_prologue(self):
        A = self.A
        A("v_mov_b32 v2, 0x%x" % WS_NONCE)
        A("global_load_dword v%d, v2, %s sc1" % (V_NONCE, sp(S_WS)))
        A("s_lshl_b32 s%d, s%d, 6" % (S_T0, S_X))
        A("s_lshl_b32 s%d, s%d, 1" % (S_T1, S_Q))
        A("s_add_u32 s%d, s%d, s%d" % (S_T0, S_T0, S_T1))
        A("s_add_u32 s%d, s%d, s%d" % (S_T0, S_T0, S_CH))
        A("s_lshl_b32 s%d, s%d, 8" % (S_T1, S_T0))
        A("s_lshl_b32 s%d, s%d, 7" % (S_T2, S_HF))
        A("s_add_u32 s%d, s%d, s%d" % (S_T1, S_T1, S_T2))
        A("v_lshlrev_b32 v2, 1, v%d" % V_LANE)
        A("v_add_u32 v2, s%d, v2" % S_T1)
        for i, s in enumerate((S_ARE, S_AIM, S_BRE, S_BIM, S_CRE, S_CIM)):
            A("global_load_ushort v%d, v2, %s" % (V_PARAM + i, sp(s)))
        A("s_lshl_b32 s%d, s%d, 1" % (S_T1, S_T0))
        A("v_mov_b32 v3, s%d" % S_T1)
        A("global_load_ushort v%d, v3, %s" % (V_PARAM + 6, sp(S_LDT)))
        A("global_load_ushort v%d, v3, %s" % (V_PARAM + 7, sp(S_DSK)))

    def code_prefetch(self):
        A = self.A
        A("s_getpc_b64 %s" % sp(S_C))
        lp = self.lab("Lpc")
        A.label(lp)
        A("s_sub_u32 s%d, s%d, %s-%s" % (S_C, S_C, lp, KNAME))
        A("s_subb_u32 s%d, s%d, 0" % (S_C + 1, S_C + 1))
        A("v_lshlrev_b32 v2, 7, v0")
        A("v_min_u32 v3, Lcode_end-%s-4, v2" % KNAME)
        A("global_load_dword v62, v3, %s" % sp(S_C))
        A("v_add_u32 v2, 32768, v2")
        A("v_min_u32 v3, Lcode_end-%s-4, v2" % KNAME)
        A("global_load_dword v63, v3, %s" % sp(S_C))

    def nonce_finish(self):
        A = self.A
        A("v_readfirstlane_b32 s%d, v%d" % (S_NONCE, V_NONCE))
        A("s_nop 1")
        A("s_mul_i32 s%d, s%d, 0x9E3779B1" % (S_NONCE, S_NONCE))
        A("s_add_u32 s%d, s%d, 0x7F4A7C15" % (S_NONCE, S_NONCE))
        A("s_or_b32 s%d, s%d, 1" % (S_NONCE, S_NONCE))

    def gemm1(self):
        A = self.A
        A("s_lshr_b32 s%d, s%d, 1" % (S_T0, S_X))
        A("s_lshl_b32 s%d, s%d, 2" % (S_T0, S_T0))
        A("s_and_b32 s%d, s%d, 3" % (S_T1, S_Q))
        A("s_add_u32 s%d, s%d, s%d" % (S_TB, S_T0, S_T1))
        A("s_and_b32 s%d, s%d, 1" % (S_T0, S_X))
        A("s_mul_i32 s%d, s%d, 7" % (S_T0, S_T0))
        A("s_lshr_b32 s%d, s%d, 2" % (S_T1, S_Q))
        A("s_add_u32 s%d, s%d, s%d" % (S_FB, S_T0, S_T1))
        VX, VW = 20, 24
        A("v_lshrrev_b32 v2, 3, v%d" % V_LANE)
        A("v_and_b32 v3, 7, v%d" % V_LANE)
        A("v_lshrrev_b32 v4, 4, v%d" % V_LANE)
        A("v_xor_b32 v3, v3, v4")
        A("v_lshlrev_b32 v3, 4, v3")
        A("v_lshl_add_u32 v%d, v2, 10, v3" % VX)
        A("v_xor_b32 v5, 64, v%d" % VX)
        A("v_add_u32 v%d, %d, v5" % (VX + 1, 7168))
        A("v_add_u32 v%d, %d, v%d" % (VX + 2, 2 * 7168, VX))
        A("v_add_u32 v%d, %d, v5" % (VX + 3, 3 * 7168))
        A("v_lshrrev_b32 v2, 2, v%d" % V_LANE)
        A("v_and_b32 v2, 3, v2")
        A("v_xor_b32 v2, v2, v4")
        A("v_lshlrev_b32 v2, 2, v2")
        A("v_and_b32 v3, 3, v%d" % V_LANE)
        A("v_or_b32 v2, v2, v3")
        A("v_lshlrev_b32 v2, 4, v2")
        A("v_mul_u32_u24 v3, 3584, v4")
        A("v_add_u32 v%d, v2, v3" % VW)
        for j in range(1, 4):
            A("v_add_u32 v%d, %d, v%d" % (VW + j, j * (14336 - 1024), VW))
        A("s_lshl_b32 s%d, s%d, 17" % (S_SOX, S_TB))
        A("s_lshl_b32 s%d, s%d, 15" % (S_T0, S_WAVE))
        A("s_add_u32 s%d, s%d, s%d" % (S_SOX, S_SOX, S_T0))
        A("s_mul_i32 s%d, s%d, %d" % (S_SOW, S_WAVE, 16 * 3584))
        A("s_lshl_b32 s%d, s%d, 8" % (S_T0, S_FB))
        A("s_add_u32 s%d, s%d, s%d" % (S_SOW, S_SOW, S_T0))

        def dma_chunk(c):
            slot = c & 3
            tag = "chunk%d" % c
            A("s_add_u32 m0, s%d, %d" % (S_M0W, slot * 32768))
            A("s_add_u32 s%d, s%d, %d" % (S_T0, S_SOX, 128 * c))
            for i in range(4):
                A("buffer_load_dwordx4 v%d, s[%d:%d], s%d offen offset:%d lds" % (VX + i, SRD_U, SRD_U + 3, S_T0, i * 1024), tag)
            A("s_add_u32 m0, s%d, %d" % (S_M0W, slot * 32768 + 16384))
            A("s_add_u32 s%d, s%d, %d" % (S_T1, S_SOW, 64 * c * 3584))
            for j in range(4):
                A("buffer_load_dwordx4 v%d, s[%d:%d], s%d offen offset:%d lds" % (VW + j, SRD_W1, SRD_W1 + 3, S_T1, j * 1024), tag)

        dma_chunk(0)
        ACC = 64
        VB = 28
        A("s_and_b32 s%d, s%d, 1" % (S_T0, S_WAVE))
        A("s_lshl_b32 s%d, s%d, 7" % (S_T0, S_T0))
        A("s_lshl_b32 s%d, s%d, 8" % (S_T1, S_FB))
        A("s_add_u32 s%d, s%d, s%d" % (S_T0, S_T0, S_T1))
        A("v_lshrrev_b32 v2, 5, v%d" % V_LANE)
        A("v_lshlrev_b32 v2, 3, v2")
        A("v_add_u32 v2, s%d, v2" % S_T0)
        for ft in range(2):
            for g in range(4):
                A("global_load_dwordx2 %s, v2, %s offset:%d" % (vr(VB + (ft * 4 + g) * 2, 2), sp(S_B1), ft * 64 + g * 16))
        self.code_prefetch()
        for c in range(1, 4):
            dma_chunk(c)
        self.late_prologue()
        VXA, VWA = 44, 52
        A("v_and_b32 v2, 31, v%d" % V_LANE)
        A("v_lshrrev_b32 v3, 5, v%d" % V_LANE)
        A("v_lshrrev_b32 v4, 1, v%d" % V_LANE)
        A("v_and_b32 v4, 7, v4")
        A("s_lshr_b32 s%d, s%d, 1" % (S_T0, S_WAVE))
        A("s_lshl_b32 s%d, s%d, 13" % (S_T0, S_T0))
        A("v_lshlrev_b32 v2, 7, v2")
        A("v_add_u32 v2, s%d, v2" % S_T0)
        for k in range(4):
            A("v_add_u32 v5, %d, v3" % (2 * k))
            A("v_xor_b32 v5, v5, v4")
            A("v_lshl_add_u32 v%d, v5, 4, v2" % (VXA + k))
            A("v_add_u32 v%d, 0x10000, v%d" % (VXA + 4 + k, VXA + k))
        A("v_lshrrev_b32 v4, 2, v%d" % V_LANE)
        A("v_and_b32 v4, 3, v4")
        A("v_lshl_add_u32 v5, v3, 3, v4")
        A("v_lshlrev_b32 v5, 8, v5")
        A("v_lshrrev_b32 v6, 4, v%d" % V_LANE)
        A("v_and_b32 v6, 1, v6")
        A("v_lshl_add_u32 v5, v6, 5, v5")
        A("v_and_b32 v6, 3, v%d" % V_LANE)
        A("v_lshl_add_u32 v5, v6, 3, v5")
        A("v_add_u32 v5, 16384, v5")
        A("s_and_b32 s%d, s%d, 1" % (S_T0, S_WAVE))
        A("s_lshl_b32 s%d, s%d, 1" % (S_T0, S_T0))
        A("v_xor_b32 v6, s%d, v4" % S_T0)
        A("v_lshl_add_u32 v%d, v6, 6, v5" % VWA)
        A("v_xor_b32 v%d, 64, v%d" % (VWA + 1, VWA))
        A("v_add_u32 v%d, 0x10000, v%d" % (VWA + 2, VWA))
        A("v_add_u32 v%d, 0x10000, v%d" % (VWA + 3, VWA + 1))
        for ft in range(2):
            for g in range(4):
                for d in range(2):
                    src = VB + (ft * 4 + g) * 2 + d
                    a0 = ACC + 32 * ft + 4 * g + 2 * d
                    A("v_lshlrev_b32 v%d, 16, v%d" % (a0, src))
                    A("v_and_b32 v%d, 0xffff0000, v%d" % (a0 + 1, src))
                    A("v_mov_b32 v%d, v%d" % (a0 + 16, a0))
                    A("v_mov_b32 v%d, v%d" % (a0 + 17, a0 + 1))

        FR = 128

        def reads(n):
            c, k = n >> 2, n & 3
            slot = c & 3
            hi = slot >> 1
            p = n & 1
            base = FR + 16 * p
            so = (slot & 1) * 32768
            xa = VXA + 4 * hi + k
            r = []
            for i in range(2):
                r.append("ds_read_b64_tr_b16 %s, v%d offset:%d" % (vr(base + 2 * i, 2), VWA + 2 * hi, so + k * 4096 + i * 1024))
            r.append("ds_read_b128 %s, v%d offset:%d" % (vr(base + 8, 4), xa, so))
            r.append("ds_read_b128 %s, v%d offset:%d" % (vr(base + 12, 4), xa, so + 4096))
            for i in range(2):
                r.append("ds_read_b64_tr_b16 %s, v%d offset:%d" % (vr(base + 4 + 2 * i, 2), VWA + 2 * hi + 1, so + k * 4096 + i * 1024))
            return r

        def mfmas(n):
            base = FR + 16 * (n & 1)
            m = []
            for ft in range(2):
                for tt in range(2):
                    acc = vr(ACC + 32 * ft + 16 * tt, 16)
                    m.append("v_mfma_f32_32x32x16_bf16 %s, %s, %s, %s" % (acc, vr(base + 4 * ft, 4), vr(base + 8 + 4 * tt, 4), acc))
            return m

        A.wait_vm("chunk0")
        A("s_barrier")
        for r in reads(0):
            A(r)
        for n in range(32):
            m = mfmas(n)
            if n == 31:
                for x in m:
                    A(x)
                break
            if (n + 1) % 4 == 0:
                c1 = (n + 1) >> 2
                A("s_waitcnt lgkmcnt(0)")
                A.wait_vm("chunk%d" % c1)
                A("s_barrier")
                rs = reads(n + 1)
                A(m[0])
                for r in rs[:3]:
                    A(r)
                A(m[1])
                for r in rs[3:]:
                    A(r)
                A(m[2])
                if c1 + 3 < 8:
                    dma_chunk(c1 + 3)
                A(m[3])
            else:
                rs = reads(n + 1)
                A(m[0])
                A(rs[0]); A(rs[1])
                A(m[1])
                A(rs[2]); A(rs[3])
                A(m[2])
                A(rs[4]); A(rs[5])
                A(m[3])

        VH = 44
        A("s_lshl_b32 s%d, s%d, 2" % (S_T0, S_TB))
        A("s_lshr_b32 s%d, s%d, 1" % (S_T1, S_WAVE))
        A("s_lshl_b32 s%d, s%d, 1" % (S_T1, S_T1))
        A("s_add_u32 s%d, s%d, s%d" % (S_T0, S_T0, S_T1))
        A("s_mul_i32 s%d, s%d, 112" % (S_T0, S_T0))
        A("s_lshl_b32 s%d, s%d, 3" % (S_T1, S_FB))
        A("s_add_u32 s%d, s%d, s%d" % (S_T0, S_T0, S_T1))
        A("s_and_b32 s%d, s%d, 1" % (S_T1, S_WAVE))
        A("s_lshl_b32 s%d, s%d, 2" % (S_T1, S_T1))
        A("s_add_u32 s%d, s%d, s%d" % (S_T0, S_T0, S_T1))
        A("s_lshl_b32 s%d, s%d, 10" % (S_T0, S_T0))
        A("s_add_u32 s%d, s%d, 0x%x" % (S_T0, S_T0, WS_H))
        A("v_lshlrev_b32 v2, 4, v%d" % V_LANE)
        A("v_add_u32 v%d, s%d, v2" % (VH, S_T0))
        A("v_add_u32 v%d, %d, v%d" % (VH + 1, 112 * 1024, VH))
        T = 128
        grp = 0
        for ft in range(2):
            for gp in range(2):
                for tt in range(2):
                    a0 = ACC + 32 * ft + 16 * tt + 8 * gp
                    t0 = T + 16 * (grp & 1)
                    o0 = t0 + 8
                    grp += 1
                    P = range(4)
                    for p in P:
                        A("v_pk_mul_f32 %s, %s, %s" % (vr(t0 + 2 * p, 2), vr(a0 + 2 * p, 2), sp(S_L2E)))
                    for e in range(8):
                        A("v_exp_f32 v%d, v%d" % (t0 + e, t0 + e))
                    for p in P:
                        A("v_pk_add_f32 %s, %s, 1.0 op_sel_hi:[1,0]" % (vr(t0 + 2 * p, 2), vr(t0 + 2 * p, 2)))
                    for p in P:
                        A("v_pk_fma_f32 %s, %s, %s, 1.0 op_sel_hi:[1,1,0]" % (vr(t0 + 2 * p, 2), vr(t0 + 2 * p, 2), vr(t0 + 2 * p, 2)))
                    for e in range(8):
                        A("v_rcp_f32 v%d, v%d" % (t0 + e, t0 + e))
                    for p in P:
                        A("v_pk_fma_f32 %s, %s, -2.0, 1.0 op_sel_hi:[1,0,0]" % (vr(t0 + 2 * p, 2), vr(t0 + 2 * p, 2)))
                    for p in P:
                        A("v_pk_mul_f32 %s, %s, %s" % (vr(t0 + 2 * p, 2), vr(a0 + 2 * p, 2), vr(t0 + 2 * p, 2)))
                    for p in P:
                        A("v_cvt_pk_bf16_f32 v%d, v%d, v%d" % (o0 + p, t0 + 2 * p, t0 + 2 * p + 1))
                    A("global_store_dwordx4 v%d, %s, %s offset:%d sc1" % (VH + tt, vr(o0, 4), sp(S_WS), (2 * ft + gp) * 1024))
        self.nonce_finish()
        A("s_lshl_b32 s%d, s%d, 7" % (S_T0, S_TB))
        A("s_lshl_b32 s%d, s%d, 2" % (S_T1, S_FB))
        A("s_add_u32 s%d, s%d, s%d" % (S_T0, S_T0, S_T1))
        A("s_add_u32 s%d, s%d, 0x%x" % (S_T0, S_T0, WS_FH))
        self.set_flag(S_T0, 2, 3)

    def trole(self):
        A = self.A
        A("s_sub_u32 s%d, s%d, 28" % (S_T0, S_Q))
        A("s_lshl_b32 s%d, s%d, 3" % (S_T0, S_T0))
        A("s_add_u32 s%d, s%d, s%d" % (S_TB, S_T0, S_X))
        A("v_lshlrev_b32 v20, 4, v%d" % V_LANE)
        A("s_lshl_b32 s%d, s%d, 16" % (S_SOX, S_TB))
        A("s_lshl_b32 s%d, s%d, 14" % (S_T0, S_WAVE))
        A("s_add_u32 s%d, s%d, s%d" % (S_SOX, S_SOX, S_T0))
        A("s_mul_i32 s%d, s%d, %d" % (S_SOW, S_WAVE, 16 * 1280))
        for r in range(16):
            pad = 32 * ((r & 3) + 4 * ((r >> 3) & 1))
            A("s_add_u32 m0, s%d, %d" % (S_SOW, r * 1280 + pad))
            A("s_add_u32 s%d, s%d, %d" % (S_T0, S_SOX, r * 1024))
            A("buffer_load_dwordx4 v20, s[%d:%d], s%d offen lds" % (SRD_U, SRD_U + 3, S_T0), "trows")
        A("v_lshrrev_b32 v2, 4, v%d" % V_LANE)
        A("v_lshlrev_b32 v3, 4, v2")
        GW = 128
        for k in range(16):
            A("global_load_dwordx4 %s, v3, %s offset:%d" % (vr(GW + 4 * k, 4), sp(S_GW), 64 * k))
        self.code_prefetch()
        self.late_prologue()
        A("v_and_b32 v4, 15, v%d" % V_LANE)
        A("v_mul_u32_u24 v5, 1280, v4")
        A("v_and_b32 v6, 3, v4")
        A("v_lshrrev_b32 v7, 3, v4")
        A("v_lshl_add_u32 v6, v7, 2, v6")
        A("v_lshl_add_u32 v5, v6, 5, v5")
        A("v_lshrrev_b32 v2, 4, v%d" % V_LANE)
        A("v_lshl_add_u32 v5, v2, 4, v5")
        A("v_add_u32 v5, s%d, v5" % S_SOW)
        A.wait_vm("trows")
        A("s_barrier")
        UB = 192
        for k in range(16):
            A("ds_read_b128 %s, v5 offset:%d" % (vr(UB + 4 * (k % 16), 4), 64 * k))
        for k in range(16):
            A("v_mfma_f32_16x16x32_bf16 v[24:27], %s, %s, %s" % (vr(GW + 4 * k, 4), vr(UB + 4 * k, 4), "0" if k == 0 else "v[24:27]"))
        A("v_lshrrev_b32 v2, 4, v%d" % V_LANE)
        A("v_lshrrev_b32 v3, 2, v%d" % V_LANE)
        A("v_and_b32 v3, 3, v3")
        A("v_lshl_add_u32 v4, v2, 3, v3")
        A("v_mul_u32_u24 v4, 1280, v4")
        A("v_and_b32 v6, 1, v2")
        A("v_lshl_add_u32 v6, v6, 2, v3")
        A("v_lshl_add_u32 v4, v6, 5, v4")
        A("v_and_b32 v6, 3, v%d" % V_LANE)
        A("v_lshl_add_u32 v4, v6, 3, v4")
        A("s_lshl_b32 s%d, s%d, 8" % (S_T0, S_WAVE))
        A("v_add_u32 v4, s%d, v4" % S_T0)
        A("s_lshl_b32 s%d, s%d, 19" % (S_T0, S_WAVE))
        A("s_lshl_b32 s%d, s%d, 11" % (S_T1, S_TB))
        A("s_add_u32 s%d, s%d, s%d" % (S_T0, S_T0, S_T1))
        A("v_lshlrev_b32 v6, 4, v%d" % V_LANE)
        A("v_add_u32 v6, s%d, v6" % S_T0)
        if WS_UT:
            A("v_add_u32 v6, 0x%x, v6" % WS_UT)
        TR = 128
        it = 0
        for cg in range(8):
            for oq in range(2):
                d = TR + 4 * (it % 16)
                it += 1
                for i in range(2):
                    A("ds_read_b64_tr_b16 %s, v4 offset:%d" % (vr(d + 2 * i, 2), oq * 40960 + i * 5120 + cg * 32))
            for oq in range(2):
                d = TR + 4 * ((it - 2 + oq) % 16)
                A("global_store_dwordx4 v6, %s, %s offset:%d sc1" % (vr(d, 4), sp(S_WS), oq * 1024))
            if cg < 7:
                A("v_add_u32 v6, 0x10000, v6")
        A("v_mul_f32 v24, %s, v24" % fhex(-L2E_HI))
        A("v_exp_f32 v24, v24")
        A("v_add_f32 v24, 1.0, v24")
        A("v_rcp_f32 v24, v24")
        A("s_lshl_b32 s%d, s%d, 8" % (S_T0, S_TB))
        A("s_lshl_b32 s%d, s%d, 6" % (S_T1, S_WAVE))
        A("s_add_u32 s%d, s%d, s%d" % (S_T0, S_T0, S_T1))
        A("s_add_u32 s%d, s%d, 0x%x" % (S_T0, S_T0, WS_G))
        A("v_lshlrev_b32 v6, 2, v%d" % V_LANE)
        A("v_add_u32 v6, s%d, v6" % S_T0)
        self.exec_mask("0xffff")
        A("global_store_dword v6, v24, %s sc1" % sp(S_WS))
        self.exec_restore()
        self.nonce_finish()
        A("s_lshl_b32 s%d, s%d, 2" % (S_T0, S_TB))
        A("s_add_u32 s%d, s%d, 0x%x" % (S_T0, S_T0, WS_FU))
        self.set_flag(S_T0, 2, 3)

    def w2_setup(self):
        A = self.A
        A("v_lshrrev_b32 v2, 3, v%d" % V_LANE)
        A("v_and_b32 v3, 7, v%d" % V_LANE)
        A("v_lshrrev_b32 v4, 4, v%d" % V_LANE)
        A("v_and_b32 v4, 1, v4")
        A("v_lshlrev_b32 v4, 2, v4")
        A("v_xor_b32 v3, v3, v4")
        A("v_lshlrev_b32 v3, 4, v3")
        A("v_lshl_add_u32 v8, v2, 10, v3")
        A("s_mul_i32 s%d, s%d, %d" % (S_W2O, S_WAVE, 448 * 1024))
        A("s_and_b32 s%d, s%d, 7" % (S_T0, S_Q))
        A("s_lshl_b32 s%d, s%d, 7" % (S_T0, S_T0))
        A("s_add_u32 s%d, s%d, s%d" % (S_W2O, S_W2O, S_T0))
        A("s_mul_i32 s%d, s%d, 14336" % (S_W2O + 1, S_WAVE))
        A("v_lshrrev_b32 v2, 5, v%d" % V_LANE)
        A("v_lshrrev_b32 v3, 2, v%d" % V_LANE)
        A("v_and_b32 v3, 3, v3")
        A("v_lshl_add_u32 v2, v2, 2, v3")
        A("v_lshlrev_b32 v2, 7, v2")
        A("v_lshrrev_b32 v3, 1, v3")
        A("v_lshl_add_u32 v2, v3, 6, v2")
        A("v_lshrrev_b32 v3, 4, v%d" % V_LANE)
        A("v_and_b32 v3, 1, v3")
        A("v_lshl_add_u32 v2, v3, 5, v2")
        A("v_and_b32 v3, 3, v%d" % V_LANE)
        A("v_lshl_add_u32 v2, v3, 3, v2")
        A("v_add_u32 v9, s%d, v2" % (S_W2O + 1))
        A("v_xor_b32 v19, 64, v9")

    def w2_issue(self, b):
        A = self.A
        for j in range(14):
            if j % 4 == 0:
                A("s_add_u32 m0, s%d, %d" % (S_W2O + 1, W2S + j * 1024))
                A("s_add_u32 s%d, s%d, %d" % (S_T3, S_W2O, (112 * b + 8 * j) * 1024))
                A("v_mov_b32 v7, v8")
            jj = j % 4
            if jj:
                A("v_add_u32 v7, %d, v7" % (8192 - 1024))
            A("buffer_load_dwordx4 v7, s[%d:%d], s%d offen offset:%d lds" % (SRD_W2, SRD_W2 + 3, S_T3, jj * 1024), "w2b%d" % b)

    def w2_fetch(self, b):
        A = self.A
        A.wait_vm("w2b%d" % b)
        for ks in range(7):
            for dt in range(2):
                for i in range(2):
                    a0 = ((7 * b + ks) * 2 + dt) * 4 + 2 * i
                    A("ds_read_b64_tr_b16 %s, v%d offset:%d" % (ar(a0, 2), 9 if dt == 0 else 19, W2S + ks * 2048 + i * 1024))
        A("s_waitcnt lgkmcnt(0)")

    def cmul(self, dst, a, b, t):
        A = self.A
        A("v_pk_mul_f32 %s, %s, %s op_sel:[0,0] op_sel_hi:[0,1]" % (vr(t, 2), vr(a, 2), vr(b, 2)))
        A("v_pk_fma_f32 %s, %s, %s, %s op_sel:[1,1,0] op_sel_hi:[1,0,1] neg_lo:[0,1,0]" % (vr(dst, 2), vr(a, 2), vr(b, 2), vr(t, 2)))

    def kgen(self):
        A = self.A
        P = V_PARAM
        for i in range(8):
            A("v_lshlrev_b32 v%d, 16, v%d" % (P + i, P + i))
        ARE, AIM, BRE, BIM, CRE, CIM, LDT = (P + i for i in range(7))
        A("v_mul_f32 v2, s%d, v%d" % (S_L2E, LDT))
        A("v_fma_f32 v3, v%d, s%d, -v2" % (LDT, S_L2E))
        A("v_mov_b32 v4, %s" % fhex(L2E_LO))
        A("v_fmac_f32 v3, v%d, v4" % LDT)
        A("v_exp_f32 v2, v2")
        A("v_mul_f32 v3, %s, v3" % fhex(LN2))
        A("v_fma_f32 v2, v2, v3, v2")
        A("v_cvt_pk_bf16_f32 v2, v2, v2")
        A("v_lshlrev_b32 v2, 16, v2")
        A("v_mul_f32 v%d, v2, v%d" % (ARE, ARE))
        A("v_mul_f32 v%d, v2, v%d" % (AIM, AIM))
        A("v_mul_f32 v%d, v2, v%d" % (BRE, BRE))
        A("v_mul_f32 v%d, v2, v%d" % (BIM, BIM))
        CB = 64
        A("v_mul_f32 v%d, v%d, v%d" % (CB, CRE, BRE))
        A("v_mul_f32 v%d, v%d, v%d" % (CB + 1, CRE, BIM))
        A("v_fma_f32 v%d, -v%d, v%d, v%d" % (CB, CIM, BIM, CB))
        A("v_fma_f32 v%d, v%d, v%d, v%d" % (CB + 1, CIM, BRE, CB + 1))
        A("v_mul_f32 v%d, s%d, v%d" % (ARE, S_L2E, ARE))
        A("v_mul_f32 v%d, %s, v%d" % (AIM, fhex(INV2PI), AIM))
        W1, W8, W256 = 66, 68, 70
        for dst, m in ((W1, 1.0), (W8, 8.0), (W256, 256.0)):
            A("v_mul_f32 v2, %s, v%d" % (fhex(m), ARE))
            A("v_mul_f32 v3, %s, v%d" % (fhex(m), AIM))
            A("v_exp_f32 v2, v2")
            A("v_fract_f32 v3, v3")
            A("v_cos_f32 v4, v3")
            A("v_sin_f32 v5, v3")
            A("v_mul_f32 v%d, v2, v4" % dst)
            A("v_mul_f32 v%d, v2, v5" % (dst + 1))
        VT = 6
        A("s_mul_i32 s%d, s%d, %d" % (S_T0, S_CH, XT_CH))
        A("s_lshl_b32 s%d, s%d, 8" % (S_T1, S_HF))
        A("s_add_u32 s%d, s%d, s%d" % (S_T0, S_T0, S_T1))
        A("s_add_u32 s%d, s%d, %d" % (S_T0, S_T0, XT))
        A("v_lshlrev_b32 v%d, 2, v%d" % (VT, V_LANE))
        A("v_add_u32 v%d, s%d, v%d" % (VT, S_T0, VT))
        TMP = [72, 74, 76, 78]
        PK = [80, 81, 82, 83]
        npk = [0]

        def put(src, row, conj):
            d = PK[npk[0] % 4]
            npk[0] += 1
            A("v_cvt_pk_bf16_f32 v%d, v%d, %sv%d" % (d, src, "-" if conj else "", src + 1))
            A("ds_write_b32 v%d, v%d offset:%d" % (VT, d, (YOFF if conj else 0) + row * TROW))

        W16 = 84
        self.cmul(W16, W8, W8, TMP[0])
        E0, E1, O0, O1 = 86, 88, 90, 92
        A("v_mov_b32 v%d, v%d" % (E0, CB))
        A("v_mov_b32 v%d, v%d" % (E0 + 1, CB + 1))
        self.cmul(O0, CB, W8, TMP[1])
        ev, od = [E0, E1], [O0, O1]
        C = {1: W1}
        for k, r in zip((2, 3, 4, 5, 6, 7), (94, 96, 98, 100, 102, 104)):
            C[k] = r
        W512, W768, W1024 = 106, 108, 110
        CT = [112, 114, 116, 118]
        coarse = []
        coarse.append(lambda: (A("v_mov_b32 v%d, 0x3f80" % PK[0]), A("ds_write_b32 v%d, v%d offset:%d" % (VT, PK[0], YOFF))))
        coarse.append(lambda: put(C[1], 1, True))
        coarse.append(lambda: (self.cmul(C[2], C[1], C[1], TMP[2]), put(C[2], 2, True)))
        coarse.append(lambda: (self.cmul(C[3], C[2], C[1], TMP[2]), put(C[3], 3, True)))
        coarse.append(lambda: (self.cmul(C[4], C[2], C[2], TMP[2]), put(C[4], 4, True)))
        coarse.append(lambda: (self.cmul(C[5], C[4], C[1], TMP[2]), put(C[5], 5, True)))
        coarse.append(lambda: (self.cmul(C[6], C[4], C[2], TMP[2]), put(C[6], 6, True)))
        coarse.append(lambda: (self.cmul(C[7], C[4], C[3], TMP[2]), put(C[7], 7, True)))
        coarse.append(lambda: put(W256, 8, True))
        coarse.append(lambda: (self.cmul(CT[0], W256, C[2], TMP[2]), put(CT[0], 9, True)))
        coarse.append(lambda: (self.cmul(CT[1], W256, C[4], TMP[2]), put(CT[1], 10, True)))
        coarse.append(lambda: (self.cmul(CT[2], W256, C[6], TMP[2]), put(CT[2], 11, True)))
        coarse.append(lambda: (self.cmul(W512, W256, W256, TMP[2]), put(W512, 12, True)))
        coarse.append(lambda: (self.cmul(CT[3], W512, C[4], TMP[2]), put(CT[3], 13, True)))
        coarse.append(lambda: (self.cmul(W768, W512, W256, TMP[2]), put(W768, 14, True)))
        coarse.append(lambda: (self.cmul(CT[0], W768, C[4], TMP[2]), put(CT[0], 15, True)))
        coarse.append(lambda: (self.cmul(W1024, W512, W512, TMP[2]), put(W1024, 16, True)))
        coarse.append(lambda: (self.cmul(CT[1], W1024, W256, TMP[2]), put(CT[1], 17, True)))
        coarse.append(lambda: (self.cmul(CT[2], W1024, W512, TMP[2]), put(CT[2], 18, True)))
        coarse.append(lambda: (self.cmul(CT[3], W1024, W768, TMP[2]), put(CT[3], 19, True)))
        coarse.append(lambda: (self.cmul(CT[0], W1024, W1024, TMP[2]), put(CT[0], 20, True)))
        ci = 0
        for a in range(16):
            cur, nxt = a & 1, (a + 1) & 1
            if a < 15:
                self.cmul(ev[nxt], ev[cur], W16, TMP[0])
                self.cmul(od[nxt], od[cur], W16, TMP[1])
            put(ev[cur], 2 * a, False)
            put(od[cur], 2 * a + 1, False)
            for _ in range(2 if a < 5 else 1):
                if ci < len(coarse):
                    coarse[ci]()
                    ci += 1
        while ci < len(coarse):
            coarse[ci]()
            ci += 1

    def kmat(self):
        A = self.A
        A("s_lshl_b32 s%d, s%d, 13" % (S_T0, S_HF))
        A("v_lshlrev_b32 v2, 4, v%d" % V_LANE)
        A("v_add_u32 v2, s%d, v2" % S_T0)
        for j in range(8):
            if j == 4:
                A("v_add_u32 v2, 4096, v2")
            A("global_load_dwordx4 %s, v2, %s offset:%d" % (vr(128 + 4 * j, 4), sp(S_TBL), (j % 4) * 1024))
        A("s_waitcnt lgkmcnt(0)")
        A("s_barrier")
        A("v_and_b32 v2, 15, v%d" % V_LANE)
        A("v_lshrrev_b32 v3, 4, v%d" % V_LANE)
        A("v_mul_u32_u24 v4, %d, v2" % TROW)
        A("v_lshl_add_u32 v4, v3, 4, v4")
        A("s_mul_i32 s%d, s%d, %d" % (S_T0, S_CH, XT_CH))
        A("s_add_u32 s%d, s%d, %d" % (S_T0, S_T0, XT))
        A("v_add_u32 v5, s%d, v4" % S_T0)
        A("s_mul_i32 s%d, s%d, %d" % (S_T1, S_HF, 16 * TROW))
        A("v_add_u32 v4, s%d, v5" % S_T1)
        XA, YB = 64, 160
        for ks in range(8):
            A("ds_read_b128 %s, v4 offset:%d" % (vr(XA + 4 * ks, 4), ks * 64))
            for bt in range(2):
                A("ds_read_b128 %s, v5 offset:%d" % (vr(YB + 8 * ks + 4 * bt, 4), YOFF + bt * 16 * TROW + ks * 64))
        T0, T1 = 96, 100
        for ks in range(8):
            for bt, acc in ((0, T0), (1, T1)):
                A("v_mfma_f32_16x16x32_bf16 %s, %s, %s, %s" % (vr(acc, 4), vr(XA + 4 * ks, 4), vr(YB + 8 * ks + 4 * bt, 4), "0" if ks == 0 else vr(acc, 4)))
        A("v_mov_b32 v104, 8")
        A("v_mov_b32 v105, v2")
        A("v_cmp_lt_u32 vcc, 7, v2")
        A("v_add_u32 v6, 248, v2")
        A("v_cndmask_b32 v104, v104, 4, vcc")
        A("v_cndmask_b32 v105, v105, v6, vcc")
        A("v_cmp_lt_u32 vcc, 11, v2")
        A("v_add_u32 v6, 372, v2")
        A("v_cndmask_b32 v104, v104, 2, vcc")
        A("v_cndmask_b32 v105, v105, v6, vcc")
        A("v_cmp_lt_u32 vcc, 13, v2")
        A("v_add_u32 v6, 434, v2")
        A("v_cndmask_b32 v105, v105, v6, vcc")
        A("v_lshlrev_b32 v6, 5, v2")
        A("v_add_u32 v107, 512, v6")
        A("v_mov_b32 v106, 1")
        A("v_cmp_lt_u32 vcc, 3, v2")
        A("v_cndmask_b32 v106, v106, 8, vcc")
        A("v_cmp_lt_u32 vcc, 4, v2")
        A("v_mov_b32 v6, 700")
        A("v_cndmask_b32 v107, v107, v6, vcc")
        A("v_cndmask_b32 v106, v106, 0, vcc")
        A("s_lshl_b32 s%d, s%d, 4" % (S_T1, S_HF))
        A("v_lshlrev_b32 v6, 2, v3")
        A("v_add_u32 v6, s%d, v6" % S_T1)
        A("s_lshl_b32 s%d, s%d, 11" % (S_T0, S_CH))
        A("s_add_u32 s%d, s%d, %d" % (S_T0, S_T0, CC + 4))
        for st, ba in ((104, 105), (106, 107)):
            A("v_mad_u32_u24 v%d, v%d, v6, v%d" % (ba, st, ba))
            A("v_lshlrev_b32 v%d, 1, v%d" % (ba, ba))
            A("v_add_u32 v%d, s%d, v%d" % (ba, S_T0, ba))
            A("v_lshlrev_b32 v%d, 1, v%d" % (st, st))
        for acc, st, ba in ((T0, 104, 105), (T1, 106, 107)):
            for r in range(4):
                A("v_cvt_pk_bf16_f32 v%d, v%d, v%d" % (108 + r, acc + r, acc + r))
                A("ds_write_b16 v%d, v%d" % (ba, 108 + r))
                if r < 3:
                    A("v_add_u32 v%d, v%d, v%d" % (ba, st, ba))
        A("s_sub_u32 s%d, s%d, 4" % (S_T0, S_T0))
        A("v_mov_b32 v6, s%d" % S_T0)
        A("v_mov_b32 v7, 0")
        A("ds_write_b32 v6, v7")
        A("s_waitcnt lgkmcnt(0)")
        A("s_barrier")
        for j in range(16):
            A("v_add_u32 v%d, s%d, v%d" % (128 + j, S_T0, 128 + j))
        A("s_lshl_b32 s%d, s%d, 1" % (S_T1, S_CH))
        A("s_add_u32 s%d, s%d, s%d" % (S_T1, S_T1, S_HF))
        A("s_mul_i32 s%d, s%d, %d" % (S_T1, S_T1, RV_CP))
        A("s_add_u32 s%d, s%d, %d" % (S_T1, S_T1, RV))
        A("v_lshlrev_b32 v6, 4, v%d" % V_LANE)
        A("v_add_u32 v6, s%d, v6" % S_T1)
        SRC = 160
        for j in range(4):
            for k in range(4):
                A("ds_read2_b32 %s, v%d offset0:0 offset1:1" % (vr(SRC + 8 * j + 2 * k, 2), 128 + 4 * j + k))
        for j in range(4):
            for k in range(4):
                s0 = SRC + 8 * j + 2 * k
                A("v_perm_b32 v%d, v%d, v%d, v%d" % (64 + 4 * j + k, s0 + 1, s0, 144 + 4 * j + k))
            A("ds_write_b128 v6, %s offset:%d" % (vr(64 + 4 * j, 4), j * 1024))
        for i in range(4):
            A("v_mov_b32 v%d, 0" % (80 + i))
        self.exec_mask("3")
        A("ds_write_b128 v6, v[80:83] offset:4096")
        self.exec_restore()

    def uload_issue(self):
        A = self.A
        A("v_min_u32 v2, 31, v%d" % V_LANE)
        A("v_lshlrev_b32 v2, 2, v2")
        A("v_add_u32 v2, 0x%x, v2" % WS_FU)
        self.poll(2, 3, "FU")
        A("s_lshl_b32 s%d, s%d, 2" % (S_T0, S_X))
        A("s_lshr_b32 s%d, s%d, 3" % (S_T1, S_Q))
        A("s_add_u32 s%d, s%d, s%d" % (S_T0, S_T0, S_T1))
        A("s_lshl_b32 s%d, s%d, 16" % (S_T0, S_T0))
        A("s_lshl_b32 s%d, s%d, 1" % (S_T1, S_Q))
        A("s_and_b32 s%d, s%d, 15" % (S_T1, S_T1))
        A("s_lshl_b32 s%d, s%d, 4" % (S_T1, S_T1))
        A("s_add_u32 s%d, s%d, s%d" % (S_T0, S_T0, S_T1))
        A("s_lshl_b32 s%d, s%d, 13" % (S_T1, S_WAVE))
        A("s_add_u32 s%d, s%d, s%d" % (S_T0, S_T0, S_T1))
        A("v_lshrrev_b32 v2, 1, v%d" % V_LANE)
        A("v_and_b32 v3, 1, v%d" % V_LANE)
        A("v_lshlrev_b32 v4, 8, v2")
        A("v_lshl_add_u32 v4, v3, 4, v4")
        A("v_add_u32 v4, s%d, v4" % S_T0)
        if WS_UT:
            A("v_add_u32 v4, 0x%x, v4" % WS_UT)
        A("global_load_dwordx4 v[224:227], v4, %s sc1" % sp(S_WS))
        A("v_add_u32 v4, 32768, v4")
        A("global_load_dwordx4 v[228:231], v4, %s sc1" % sp(S_WS))
        A("v_mul_u32_u24 v3, %d, v3" % UL_CH)
        A("v_lshl_add_u32 v3, v2, 4, v3")
        A("s_lshl_b32 s%d, s%d, 9" % (S_T1, S_WAVE))
        A("s_add_u32 s%d, s%d, %d" % (S_T1, S_T1, UL + 480))
        A("v_add_u32 v232, s%d, v3" % S_T1)

    def uload_commit(self):
        A = self.A
        A("ds_write_b128 v232, v[224:227]")
        A("ds_write_b128 v232, v[228:231] offset:2048")
        for i in range(4):
            A("v_mov_b32 v%d, 0" % (240 + i))
        A("s_mul_i32 s%d, s%d, %d" % (S_T1, S_CH, UL_CH))
        A("s_add_u32 s%d, s%d, %d" % (S_T1, S_T1, UL))
        A("v_lshlrev_b32 v2, 4, v%d" % V_LANE)
        A("v_add_u32 v2, s%d, v2" % S_T1)
        self.exec_mask("0x3fffffff")
        A("ds_write_b128 v2, v[240:243]")
        self.exec_restore()

    def conv(self, mid_hooks):
        A = self.A
        A("s_waitcnt lgkmcnt(0)")
        A("s_barrier")
        GA = 20
        WA = 24
        A("v_and_b32 v2, 15, v%d" % V_LANE)
        A("v_lshrrev_b32 v3, 4, v%d" % V_LANE)
        A("v_and_b32 v4, 14, v2")
        A("v_lshlrev_b32 v5, 3, v3")
        A("v_sub_u32 v5, v5, v4")
        A("v_lshlrev_b32 v5, 1, v5")
        A("v_and_b32 v4, 1, v2")
        A("v_xor_b32 v4, 1, v4")
        A("v_mul_u32_u24 v4, %d, v4" % RV_CP)
        A("v_add_u32 v5, v5, v4")
        A("s_mul_i32 s%d, s%d, %d" % (S_T0, S_CH, 2 * RV_CP))
        A("s_lshl_b32 s%d, s%d, 8" % (S_T1, S_HF))
        A("s_sub_u32 s%d, s%d, s%d" % (S_T0, S_T0, S_T1))
        A("s_add_u32 s%d, s%d, %d" % (S_T0, S_T0, RV + 2 * 2030 - 512))
        for p in range(4):
            A("v_add_u32 v%d, s%d, v5" % (GA + p, S_T0))
            if p < 3:
                A("s_sub_u32 s%d, s%d, 1024" % (S_T0, S_T0))
        A("v_lshlrev_b32 v4, 5, v2")
        A("v_lshl_add_u32 v4, v3, 4, v4")
        A("s_mul_i32 s%d, s%d, %d" % (S_T0, S_CH, UL_CH))
        A("s_lshl_b32 s%d, s%d, 8" % (S_T1, S_HF))
        A("s_sub_u32 s%d, s%d, s%d" % (S_T0, S_T0, S_T1))
        A("s_add_u32 s%d, s%d, %d" % (S_T0, S_T0, UL + 448 - 192))
        A("v_add_u32 v%d, s%d, v4" % (WA, S_T0))
        ACC = 64
        BUF = [128, 192]

        def reads(k):
            b = BUF[k & 1]
            r = []
            order = []
            for mu in range(8):
                order.append(("W", mu))
                order.append(("G", mu))
            for kind, i in order:
                if kind == "W":
                    r.append("ds_read_b128 %s, v%d offset:%d" % (vr(b + 32 + 4 * i, 4), WA, 512 * i + 192 - 64 * k))
                else:
                    p, o = i >> 1, (128 if (i & 1) == 0 else 0)
                    r.append("ds_read2_b32 %s, v%d offset0:%d offset1:%d" % (vr(b + 4 * i, 2), GA + p, o, o + 1))
                    r.append("ds_read2_b32 %s, v%d offset0:%d offset1:%d" % (vr(b + 4 * i + 2, 2), GA + p, o + 2, o + 3))
            return r

        def gstep():
            for p in range(4):
                A("v_subrev_u32 v%d, 64, v%d" % (GA + p, GA + p))

        for r in reads(0):
            A(r)
        gstep()
        for k in range(4):
            b = BUF[k & 1]
            nxt = reads(k + 1) if k < 3 else []
            ms = []
            for mu in range(8):
                for nu in range(8 - mu):
                    acc = vr(ACC + 4 * (mu + nu), 4)
                    c = "0" if (k == 0 and mu == 0) else acc
                    ms.append("v_mfma_f32_16x16x32_bf16 %s, %s, %s, %s" % (acc, vr(b + 4 * mu, 4), vr(b + 32 + 4 * nu, 4), c))
            ri = 0
            for i, m in enumerate(ms):
                A(m)
                if i >= 8 and ri < len(nxt):
                    A(nxt[ri])
                    ri += 1
            while ri < len(nxt):
                A(nxt[ri])
                ri += 1
            if k < 2:
                gstep()
            if k in mid_hooks:
                mid_hooks[k]()
        A("v_and_b32 v2, 15, v%d" % V_LANE)
        A("v_lshrrev_b32 v3, 4, v%d" % V_LANE)
        A("v_lshl_add_u32 v4, v2, 2, v3")
        A("v_lshrrev_b32 v5, 3, v4")
        A("v_and_b32 v5, 3, v5")
        A("v_xor_b32 v4, v4, v5")
        A("v_lshlrev_b32 v4, 4, v4")
        A("s_lshl_b32 s%d, s%d, 13" % (S_T0, S_WAVE))
        A("s_add_u32 s%d, s%d, %d" % (S_T0, S_T0, EX))
        A("v_add_u32 v4, s%d, v4" % S_T0)
        for c in range(8):
            A("ds_write_b128 v4, %s offset:%d" % (vr(ACC + 4 * c, 4), c * 1024))
        A("v_lshlrev_b32 v4, 1, v%d" % V_LANE)
        A("v_lshrrev_b32 v5, 3, v4")
        A("v_and_b32 v5, 3, v5")
        A("v_xor_b32 v6, v4, v5")
        A("v_lshlrev_b32 v6, 4, v6")
        A("v_xor_b32 v7, 16, v6")
        A("s_lshl_b32 s%d, s%d, 14" % (S_T0, S_CH))
        A("s_lshl_b32 s%d, s%d, 12" % (S_T1, S_HF))
        A("s_add_u32 s%d, s%d, s%d" % (S_T0, S_T0, S_T1))
        A("s_add_u32 s%d, s%d, %d" % (S_T0, S_T0, EX))
        A("v_add_u32 v6, s%d, v6" % S_T0)
        A("v_add_u32 v7, s%d, v7" % S_T0)
        A("s_mul_i32 s%d, s%d, %d" % (S_T0, S_CH, UL_CH))
        A("s_lshl_b32 s%d, s%d, 11" % (S_T1, S_HF))
        A("s_add_u32 s%d, s%d, s%d" % (S_T0, S_T0, S_T1))
        A("s_add_u32 s%d, s%d, %d" % (S_T0, S_T0, UL + 480))
        A("v_lshlrev_b32 v20, 4, v%d" % V_LANE)
        A("v_add_u32 v21, s%d, v20" % S_T0)
        A("s_lshl_b32 s%d, s%d, 6" % (S_T0, S_X))
        A("s_lshl_b32 s%d, s%d, 1" % (S_T1, S_Q))
        A("s_add_u32 s%d, s%d, s%d" % (S_T0, S_T0, S_T1))
        A("s_add_u32 s%d, s%d, s%d" % (S_T0, S_T0, S_CH))
        A("s_lshl_b32 s%d, s%d, 12" % (S_T0, S_T0))
        A("s_lshl_b32 s%d, s%d, 11" % (S_T1, S_HF))
        A("s_add_u32 s%d, s%d, s%d" % (S_T0, S_T0, S_T1))
        A("s_add_u32 s%d, s%d, 0x%x" % (S_T0, S_T0, WS_AT))
        A("v_add_u32 v22, s%d, v20" % S_T0)
        A("s_waitcnt lgkmcnt(0)")
        A("s_barrier")
        DSK = V_PARAM + 7
        for j in range(2):
            R = 128 + 32 * j
            A("ds_read_b128 %s, v6 offset:%d" % (vr(R, 4), j * 2048))
            A("ds_read_b128 %s, v7 offset:%d" % (vr(R + 4, 4), j * 2048))
            A("ds_read_b128 %s, v6 offset:%d" % (vr(R + 8, 4), 8192 + j * 2048))
            A("ds_read_b128 %s, v7 offset:%d" % (vr(R + 12, 4), 8192 + j * 2048))
            A("ds_read_b128 %s, v21 offset:%d" % (vr(R + 16, 4), j * 1024))
        for j in range(2):
            R = 128 + 32 * j
            for e in range(8):
                A("v_add_f32 v%d, v%d, v%d" % (R + e, R + e, R + 8 + e))
            for e in range(4):
                A("v_lshlrev_b32 v%d, 16, v%d" % (R + 24, R + 16 + e))
                A("v_and_b32 v%d, 0xffff0000, v%d" % (R + 25, R + 16 + e))
                A("v_fmac_f32 v%d, v%d, v%d" % (R + 2 * e, R + 24, DSK))
                A("v_fmac_f32 v%d, v%d, v%d" % (R + 2 * e + 1, R + 25, DSK))
            for e in range(4):
                A("v_cvt_pk_bf16_f32 v%d, v%d, v%d" % (R + 20 + e, R + 2 * e, R + 2 * e + 1))
            A("global_store_dwordx4 v22, %s, %s offset:%d sc1" % (vr(R + 20, 4), sp(S_WS), j * 1024))
        A("s_lshl_b32 s%d, s%d, 7" % (S_T0, S_X))
        A("s_lshl_b32 s%d, s%d, 2" % (S_T1, S_Q))
        A("s_add_u32 s%d, s%d, s%d" % (S_T0, S_T0, S_T1))
        A("s_add_u32 s%d, s%d, 0x%x" % (S_T0, S_T0, WS_FA))
        self.set_flag(S_T0, 2, 3)

    def gemm2(self):
        A = self.A
        TT, DT = S_TB, S_FB
        A("s_lshl_b32 s%d, s%d, 2" % (S_T0, S_X))
        A("s_lshr_b32 s%d, s%d, 3" % (S_T1, S_Q))
        A("s_add_u32 s%d, s%d, s%d" % (TT, S_T0, S_T1))
        A("s_and_b32 s%d, s%d, 7" % (DT, S_Q))
        A("s_lshr_b32 s%d, s%d, 1" % (S_T0, TT))
        A("s_lshl_b32 s%d, s%d, 7" % (S_T0, S_T0))
        A("s_add_u32 s%d, s%d, 0x%x" % (S_T0, S_T0, WS_FH))
        A("v_min_u32 v2, 13, v%d" % V_LANE)
        A("v_lshlrev_b32 v2, 2, v2")
        A("v_add_u32 v2, s%d, v2" % S_T0)
        self.poll(2, 3, "FH")
        A("s_lshl_b32 s%d, s%d, 1" % (S_T0, TT))
        A("s_mul_i32 s%d, s%d, 112" % (S_T0, S_T0))
        A("s_mul_i32 s%d, s%d, 28" % (S_T1, S_WAVE))
        A("s_add_u32 s%d, s%d, s%d" % (S_T0, S_T0, S_T1))
        A("s_lshl_b32 s%d, s%d, 10" % (S_T0, S_T0))
        A("s_add_u32 s%d, s%d, 0x%x" % (S_T0, S_T0, WS_H + 4096))
        A("v_lshlrev_b32 v2, 4, v%d" % V_LANE)
        A("v_add_u32 v4, s%d, v2" % S_T0)
        A("v_add_u32 v5, %d, v4" % (112 * 1024))
        ACC = 32
        HB = 96
        NB = 20

        def load(s):
            if s % 8 == 0 and s:
                A("v_add_u32 v4, 8192, v4")
                A("v_add_u32 v5, 8192, v5")
            b = HB + 8 * (s % NB)
            off = (s % 8) * 1024 - 4096
            A("global_load_dwordx4 %s, v4, %s offset:%d sc1" % (vr(b, 4), sp(S_WS), off))
            A("global_load_dwordx4 %s, v5, %s offset:%d sc1" % (vr(b + 4, 4), sp(S_WS), off))

        for s in range(NB):
            load(s)
        for s in range(28):
            b = HB + 8 * (s % NB)
            for dt in range(2):
                for tt in range(2):
                    acc = vr(ACC + 32 * dt + 16 * tt, 16)
                    A("v_mfma_f32_32x32x16_bf16 %s, %s, %s, %s" % (acc, ar((2 * s + dt) * 4, 4), vr(b + 4 * tt, 4), "0" if s == 0 else acc))
            if s + NB < 28:
                load(s + NB)
        A("s_lshl_b32 s%d, s%d, 7" % (S_T0, DT))
        A("s_add_u32 s%d, s%d, 0x%x" % (S_T0, S_T0, WS_FA))
        A("v_min_u32 v2, 31, v%d" % V_LANE)
        A("v_lshlrev_b32 v2, 2, v2")
        A("v_add_u32 v2, s%d, v2" % S_T0)
        self.poll(2, 3, "FA")
        A("s_lshl_b32 s%d, s%d, 6" % (S_T0, DT))
        A("s_lshl_b32 s%d, s%d, 4" % (S_T1, S_WAVE))
        A("s_add_u32 s%d, s%d, s%d" % (S_T0, S_T0, S_T1))
        A("s_lshl_b32 s%d, s%d, 12" % (S_T0, S_T0))
        A("s_lshl_b32 s%d, s%d, 7" % (S_T1, TT))
        A("s_add_u32 s%d, s%d, s%d" % (S_T0, S_T0, S_T1))
        A("s_add_u32 s%d, s%d, 0x%x" % (S_T0, S_T0, WS_AT))
        A("v_lshrrev_b32 v2, 3, v%d" % V_LANE)
        A("v_and_b32 v3, 7, v%d" % V_LANE)
        A("v_lshlrev_b32 v6, 12, v2")
        A("v_lshl_add_u32 v6, v3, 4, v6")
        A("v_add_u32 v6, s%d, v6" % S_T0)
        A("global_load_dwordx4 v[96:99], v6, %s sc1" % sp(S_WS))
        A("v_add_u32 v6, 32768, v6")
        A("global_load_dwordx4 v[100:103], v6, %s sc1" % sp(S_WS))
        A("s_lshl_b32 s%d, s%d, 8" % (S_T0, TT))
        A("s_lshr_b32 s%d, s%d, 1" % (S_T1, S_WAVE))
        A("s_lshl_b32 s%d, s%d, 7" % (S_T1, S_T1))
        A("s_add_u32 s%d, s%d, s%d" % (S_T0, S_T0, S_T1))
        A("s_add_u32 s%d, s%d, 0x%x" % (S_T0, S_T0, WS_G))
        A("v_and_b32 v7, 31, v%d" % V_LANE)
        A("v_lshlrev_b32 v7, 2, v7")
        A("v_add_u32 v7, s%d, v7" % S_T0)
        A("global_load_dword v20, v7, %s sc1" % sp(S_WS))
        A("v_lshlrev_b32 v21, 4, v%d" % V_LANE)
        Ls = [self.lab("Lred") for _ in range(4)]
        Le = self.lab("Lrede")
        for w in range(3):
            A("s_cmp_eq_u32 s%d, %d" % (S_WAVE, w + 1))
            A("s_cbranch_scc1 %s" % Ls[w + 1])
        for w in range(4):
            A.label(Ls[w])
            for z in range(4):
                if z == w:
                    continue
                dtz, ttz = z & 1, z >> 1
                slot = (w - z - 1) % 4
                for g in range(4):
                    A("ds_write_b128 v21, %s offset:%d" % (vr(ACC + 32 * dtz + 16 * ttz + 4 * g, 4), EXR + z * 12288 + slot * 4096 + g * 1024))
            dtw, ttw = w & 1, w >> 1
            for e in range(16):
                A("v_mov_b32 v%d, v%d" % (104 + e, ACC + 32 * dtw + 16 * ttw + e))
            if w < 3:
                A("s_branch %s" % Le)
        A.label(Le)
        A("v_lshrrev_b32 v4, 1, v2")
        A("v_and_b32 v4, 1, v4")
        A("v_lshlrev_b32 v4, 2, v4")
        A("v_xor_b32 v4, v4, v3")
        A("v_lshlrev_b32 v4, 4, v4")
        A("v_lshl_add_u32 v4, v2, 7, v4")
        A("s_lshl_b32 s%d, s%d, 11" % (S_T0, S_WAVE))
        A("s_add_u32 s%d, s%d, %d" % (S_T0, S_T0, ATL))
        A("v_add_u32 v4, s%d, v4" % S_T0)
        A("ds_write_b128 v4, v[96:99]")
        A("ds_write_b128 v4, v[100:103] offset:1024")
        A("v_lshrrev_b32 v2, 5, v%d" % V_LANE)
        A("v_lshrrev_b32 v3, 2, v%d" % V_LANE)
        A("v_and_b32 v3, 3, v3")
        A("v_lshl_add_u32 v2, v2, 2, v3")
        A("v_lshlrev_b32 v2, 7, v2")
        A("v_lshrrev_b32 v3, 1, v3")
        A("s_lshr_b32 s%d, s%d, 1" % (S_T1, S_WAVE))
        A("v_xor_b32 v3, s%d, v3" % S_T1)
        A("v_lshl_add_u32 v2, v3, 6, v2")
        A("v_lshrrev_b32 v3, 4, v%d" % V_LANE)
        A("v_and_b32 v3, 1, v3")
        A("v_lshl_add_u32 v2, v3, 5, v2")
        A("v_and_b32 v3, 3, v%d" % V_LANE)
        A("v_lshl_add_u32 v2, v3, 3, v2")
        A("s_and_b32 s%d, s%d, 1" % (S_T0, S_WAVE))
        A("s_lshl_b32 s%d, s%d, 12" % (S_T0, S_T0))
        A("s_add_u32 s%d, s%d, %d" % (S_T0, S_T0, ATL))
        A("v_add_u32 v22, s%d, v2" % S_T0)
        A("s_mul_i32 s%d, s%d, 12288" % (S_T0, S_WAVE))
        A("v_add_u32 v21, s%d, v21" % S_T0)
        A("s_waitcnt lgkmcnt(0)")
        A("s_barrier")
        for sl in range(3):
            for g in range(4):
                A("ds_read_b128 %s, v21 offset:%d" % (vr(128 + 16 * sl + 4 * g, 4), EXR + sl * 4096 + g * 1024))
        for g in range(4):
            A("ds_read_b64_tr_b16 %s, v22 offset:%d" % (vr(176 + 2 * g, 2), g * 1024))
        for e in range(16):
            A("v_add_f32 v%d, v%d, v%d" % (104 + e, 104 + e, 128 + e))
            A("v_add_f32 v%d, v%d, v%d" % (144 + e, 144 + e, 160 + e))
        for e in range(16):
            A("v_add_f32 v%d, v%d, v%d" % (104 + e, 104 + e, 144 + e))
        for g in range(4):
            for d in range(2):
                src = 176 + 2 * g + d
                b0 = 104 + 4 * g + 2 * d
                A("v_lshlrev_b32 v2, 16, v%d" % src)
                A("v_and_b32 v3, 0xffff0000, v%d" % src)
                A("v_sub_f32 v2, v2, v%d" % b0)
                A("v_sub_f32 v3, v3, v%d" % (b0 + 1))
                A("v_fmac_f32 v%d, v2, v20" % b0)
                A("v_fmac_f32 v%d, v3, v20" % (b0 + 1))
                A("v_cvt_pk_bf16_f32 v%d, v%d, v%d" % (184 + 2 * g + d, b0, b0 + 1))
        A("v_and_b32 v2, 31, v%d" % V_LANE)
        A("s_lshr_b32 s%d, s%d, 1" % (S_T1, S_WAVE))
        A("s_lshl_b32 s%d, s%d, 12" % (S_T1, S_T1))
        A("v_lshlrev_b32 v3, 7, v2")
        A("v_add_u32 v3, s%d, v3" % S_T1)
        A("v_lshrrev_b32 v4, 5, v%d" % V_LANE)
        A("v_lshl_add_u32 v3, v4, 3, v3")
        A("v_add_u32 v3, %d, v3" % OUTL)
        A("v_and_b32 v2, 7, v2")
        A("s_and_b32 s%d, s%d, 1" % (S_T0, S_WAVE))
        A("s_lshl_b32 s%d, s%d, 2" % (S_T0, S_T0))
        for g in range(4):
            A("s_add_u32 s%d, s%d, %d" % (S_T1, S_T0, g))
            A("v_xor_b32 v4, s%d, v2" % S_T1)
            A("v_lshl_add_u32 v4, v4, 4, v3")
            A("ds_write_b64 v4, %s" % vr(184 + 2 * g, 2))
        A("v_lshrrev_b32 v2, 3, v%d" % V_LANE)
        A("v_and_b32 v3, 7, v%d" % V_LANE)
        A("v_xor_b32 v4, v3, v2")
        A("v_lshlrev_b32 v4, 4, v4")
        A("v_lshl_add_u32 v4, v2, 7, v4")
        A("s_lshl_b32 s%d, s%d, 11" % (S_T0, S_WAVE))
        A("s_add_u32 s%d, s%d, %d" % (S_T0, S_T0, OUTL))
        A("v_add_u32 v4, s%d, v4" % S_T0)
        A("s_lshl_b32 s%d, s%d, 6" % (S_T0, TT))
        A("s_lshl_b32 s%d, s%d, 4" % (S_T1, S_WAVE))
        A("s_add_u32 s%d, s%d, s%d" % (S_T0, S_T0, S_T1))
        A("s_lshl_b32 s%d, s%d, 10" % (S_T0, S_T0))
        A("s_lshl_b32 s%d, s%d, 7" % (S_T1, DT))
        A("s_add_u32 s%d, s%d, s%d" % (S_T0, S_T0, S_T1))
        A("v_lshlrev_b32 v5, 10, v2")
        A("v_lshl_add_u32 v5, v3, 4, v5")
        A("v_add_u32 v5, s%d, v5" % S_T0)
        A("s_waitcnt lgkmcnt(0)")
        A("s_barrier")
        A("ds_read_b128 v[128:131], v4")
        A("ds_read_b128 v[132:135], v4 offset:1024")
        A("global_store_dwordx4 v5, v[128:131], %s" % sp(S_OUT))
        A("v_add_u32 v5, 8192, v5")
        A("global_store_dwordx4 v5, v[132:135], %s" % sp(S_OUT))

    def nonce_update(self):
        A = self.A
        Ls = self.lab("Lnonce")
        A("s_cmp_lg_u32 s2, 0")
        A("s_cbranch_scc1 %s" % Ls)
        A("s_cmp_lg_u32 s%d, 0" % S_WAVE)
        A("s_cbranch_scc1 %s" % Ls)
        for j in range(4):
            A("v_lshlrev_b32 v2, 2, v%d" % V_LANE)
            A("v_add_u32 v2, 0x%x, v2" % (WS_FA + 256 * j))
            self.poll(2, 3, "FAall")
        A("v_mov_b32 v2, 0x%x" % WS_NONCE)
        A("v_mov_b32 v3, s%d" % S_NONCE)
        self.exec_mask("1")
        A("global_store_dword v2, v3, %s sc1" % sp(S_WS))
        self.exec_restore()
        A.label(Ls)

    def build(self):
        A = self.A
        self.prologue()
        A("s_cmp_ge_u32 s%d, 28" % S_Q)
        A.save_state("roles")
        A("s_cbranch_scc1 Ltrole")
        self.gemm1()
        A.label("Lcommon")
        A("s_waitcnt vmcnt(0) lgkmcnt(0)")
        if self.stop != "A":
            A("s_barrier")
            self.w2_setup()
            self.w2_issue(0)
            self.uload_issue()
            self.kgen()
            self.w2_fetch(0)
            self.w2_issue(1)
            self.uload_commit()
            self.kmat()
            self.w2_fetch(1)
            self.w2_issue(2)

            def h1():
                self.w2_fetch(2)
                self.w2_issue(3)
            self.conv({1: h1})
            self.w2_fetch(3)
            if self.stop != "C":
                A("s_waitcnt lgkmcnt(0)")
                A("s_barrier")
                self.gemm2()
            self.nonce_update()
        A.label("Lend")
        A("s_endpgm")
        A.label("Ltrole")
        A.load_state("roles")
        self.trole()
        A("s_branch Lcommon")
        body = A.finish()
        tab = expansion_table().reshape(-1)
        tl = ["Ltable:"]
        for i in range(0, len(tab), 8):
            tl.append("  .long " + ", ".join("0x%x" % v for v in tab[i:i + 8]))
        head = open("cdna_kernels/%s.s.ref" % NAME).read().split("\n")
        hdr = [l for l in head if l.startswith(";") and "@launch" not in l and "Override launch" not in l and "grid=ceil" not in l]
        hdr = [l for l in hdr if l.startswith("; Kernarg") or l.startswith(";   offset")]
        txt = "\n".join(hdr) + "\n"
        txt += "; @launch grid=(256,1,1) block=(256,1,1) lds=%d\n" % LDS_TOTAL
        txt += '.amdgcn_target "amdgcn-amd-amdhsa--gfx950"\n.text\n.globl %s\n.p2align 8\n.type %s,@function\n%s:\n' % (KNAME, KNAME, KNAME)
        txt += body
        txt += ".p2align 7\n" + "\n".join(tl) + "\nLcode_end:\n"
        txt += """.section .rodata,"a"
.p2align 6
.amdhsa_kernel %s
  .amdhsa_next_free_vgpr 512
  .amdhsa_next_free_sgpr 102
  .amdhsa_accum_offset 256
  .amdhsa_group_segment_fixed_size 0
  .amdhsa_kernarg_size 136
  .amdhsa_user_sgpr_count 2
  .amdhsa_user_sgpr_kernarg_segment_ptr 1
  .amdhsa_system_sgpr_workgroup_id_x 1
  .amdhsa_float_denorm_mode_32 3
.end_amdhsa_kernel
""" % KNAME
        return txt


if __name__ == "__main__":
    stop = None
    out = "cdna_kernels/%s.s" % NAME
    for a in sys.argv[1:]:
        if a.startswith("stop="):
            stop = a[5:]
        elif a.startswith("out="):
            out = a[4:]
    g = Gen(stop)
    txt = g.build()
    open(out, "w").write(txt)
    print("wrote", out, "instructions:", g.A.count(), "bytes of text:", len(txt))
```
